```python
import torch

def _softmax(x, axis=-1):
    return torch.softmax(x, dim=axis)
def _gelu(x):
    return torch.nn.functional.gelu(x, approximate="tanh")
def _silu(x):
    return torch.nn.functional.silu(x)
def _sigmoid(x):
    return torch.sigmoid(x)
def _layernorm(x, axis=-1, eps=1e-5):
    m = x.mean(dim=axis, keepdim=True)
    v = x.var(dim=axis, keepdim=True, unbiased=False)
    return (x - m) / torch.sqrt(v + eps)
def _scatter_add(tgt, idx, src, axis=0):
    return tgt.clone().index_add_(axis, idx, src)
def _segment_sum(src, seg, n):
    out = torch.zeros((n,) + src.shape[1:], dtype=src.dtype)
    return out.index_add_(0, seg, src)
def _pad(x, pw):
    flat = tuple(v for pair in reversed(pw) for v in pair)
    return torch.nn.functional.pad(x, flat)

kernel_name = 'concat_heads__gqa_block_cached__gqa_block_cached__decode'

def setup_inputs():

    _w = (lambda a: (lambda t: t.to(torch.bfloat16) if t.is_floating_point() else t)(torch.as_tensor(a)))
    def _A_setup():
        B, Sq, D = 8, 1, 448
        Hq, Hkv, Sk, Dh = 16, 8, 4096, 256
        assert Hq % Hkv == 0, (Hq, Hkv)
        return {
            "x": _w((lambda *s: torch.randn(*s, dtype=torch.bfloat16) * 0.8)(B, Sq, D)),
            "k_cache": _w((lambda *s: torch.randn(*s, dtype=torch.bfloat16) * 0.8)(B, Hkv, Sk, Dh)),
            "v_cache": _w((lambda *s: torch.randn(*s, dtype=torch.bfloat16) * 0.05)(B, Hkv, Sk, Dh)),
            "wq": _w((lambda *s: torch.randn(*s, dtype=torch.bfloat16) * 0.8)(D, Hq * Dh) * (D ** -0.5)),
            "wo": _w((lambda *s: torch.randn(*s, dtype=torch.bfloat16) * 0.05)(Hq * Dh, D) * ((Hq * Dh) ** -0.5)),
        }
    _A_in = _A_setup()

    def _B_setup():
        B, Sq, D = 8, 1, 448
        Hq, Hkv, Sk, Dh = 16, 8, 4096, 256
        assert Hq % Hkv == 0, (Hq, Hkv)
        return {
            "x": _w((lambda *s: torch.randn(*s, dtype=torch.bfloat16) * 0.8)(B, Sq, D)),
            "k_cache": _w((lambda *s: torch.randn(*s, dtype=torch.bfloat16) * 0.8)(B, Hkv, Sk, Dh)),
            "v_cache": _w((lambda *s: torch.randn(*s, dtype=torch.bfloat16) * 0.05)(B, Hkv, Sk, Dh)),
            "wq": _w((lambda *s: torch.randn(*s, dtype=torch.bfloat16) * 0.8)(D, Hq * Dh) * (D ** -0.5)),
            "wo": _w((lambda *s: torch.randn(*s, dtype=torch.bfloat16) * 0.05)(Hq * Dh, D) * ((Hq * Dh) ** -0.5)),
        }
    _B_in = _B_setup()

    return {
        "A_x": _A_in["x"],
        "A_k_cache": _A_in["k_cache"],
        "A_v_cache": _A_in["v_cache"],
        "A_wq": _A_in["wq"],
        "A_wo": _A_in["wo"],
        "B_x": _B_in["x"],
        "B_k_cache": _B_in["k_cache"],
        "B_v_cache": _B_in["v_cache"],
        "B_wq": _B_in["wq"],
        "B_wo": _B_in["wo"],
    }

def reference(A_x, A_k_cache, A_v_cache, A_wq, A_wo, B_x, B_k_cache, B_v_cache, B_wq, B_wo):
    def _A_ref(x, k_cache, v_cache, wq, wo):
        B, Sq, D = x.shape
        Hq, Dh = 16, 256
        Hkv = k_cache.shape[1]
        rep = Hq // Hkv
        q = (lambda x, *d: x.permute(*d))((x @ wq).reshape(B, Sq, Hq, Dh), 0, 2, 1, 3)
        k = (lambda x, n, axis: torch.repeat_interleave(x, n, dim=axis))(k_cache, rep, axis=1)
        v = (lambda x, n, axis: torch.repeat_interleave(x, n, dim=axis))(v_cache, rep, axis=1)
        scores = torch.einsum("bhqd,bhkd->bhqk", q, k) * (Dh ** -0.5)
        p = _softmax(scores, axis=-1)
        o = torch.einsum("bhqk,bhkd->bhqd", p, v)
        return (lambda x, *d: x.permute(*d))(o, 0, 2, 1, 3).reshape(B, Sq, Hq * Dh) @ wo

    def _B_ref(x, k_cache, v_cache, wq, wo):
        B, Sq, D = x.shape
        Hq, Dh = 16, 256
        Hkv = k_cache.shape[1]
        rep = Hq // Hkv
        q = (lambda x, *d: x.permute(*d))((x @ wq).reshape(B, Sq, Hq, Dh), 0, 2, 1, 3)
        k = (lambda x, n, axis: torch.repeat_interleave(x, n, dim=axis))(k_cache, rep, axis=1)
        v = (lambda x, n, axis: torch.repeat_interleave(x, n, dim=axis))(v_cache, rep, axis=1)
        scores = torch.einsum("bhqd,bhkd->bhqk", q, k) * (Dh ** -0.5)
        p = _softmax(scores, axis=-1)
        o = torch.einsum("bhqk,bhkd->bhqd", p, v)
        return (lambda x, *d: x.permute(*d))(o, 0, 2, 1, 3).reshape(B, Sq, Hq * Dh) @ wo

    a = _A_ref(A_x, A_k_cache, A_v_cache, A_wq, A_wo)
    b = _B_ref(B_x, B_k_cache, B_v_cache, B_wq, B_wo)
    return torch.concatenate([a, b], axis=-1)
```

```python
import sys, math, os, struct as st
KNAME = "concat_heads__gqa_block_cached__gqa_block_cached__decode_kernel"
_ref = "concat_heads__gqa_block_cached__gqa_block_cached__decode.s.ref"
HDR = open(_ref).read().split("; Override launch")[0] if os.path.exists(_ref) else ""

STG  = 0x20000
S_   = 0x20000
P_   = 0x24000
OB   = 0x26000
QB   = 0x27000
FL   = 0x27400
LDS_BYTES = 0x27a00
WS_Q  = 0x1000
WS_ML = 0x50000
WS_O  = 0x60000
WS_Y  = 0x100000
WS_T  = 0x400000
WS_ST = 0x20000000

def gen(stamps=False, pol="nt", hpol="sc1", XCH=40, pf=True, diagspin=0, local=True, PRE=0, RPRE=2, QW=3,
        SLP=6, SLPN=3, WLO=16, WHI=31, W0=80, WI=None, GAIN=48, GAIN2=None, J2=112, S0=880, CK=8, DL=1,
        OW=126, WSTEP=0, early=False, YG=1, prew=None, ypol=None, DIST=6, touch=0, osplit=True, SH=2):
    L = []
    if WI is None: WI = W0
    if GAIN2 is None: GAIN2 = GAIN
    prog = stamps
    def e(s): L.append("    " + s)
    def lab(s): L.append(s + ":")
    def c(s): L.append("    ; " + s)
    def stamp(idx, wait=True):
        if not stamps: return
        e(f"s_memrealtime s[{72+2*(idx%12)}:{73+2*(idx%12)}]")
        if wait: e("s_waitcnt lgkmcnt(0)")
    def dump(idxs):
        if not stamps: return
        e("s_lshl_b32 s96, s2, 7"); e(f"s_add_u32 s96, s96, {WS_ST}")
        e("s_mov_b64 exec, 1"); e("v_mov_b32 v250, s96")
        for (idx, slot) in idxs:
            e(f"v_mov_b32 v251, s{72+2*(idx%12)}")
            e(f"global_store_dword v250, v251, s[24:25] offset:{slot*4}")
            e("s_nop 1")
    nspin = [0]
    def lds_wait_gt(sreg, off, target, vtmp, sleep=0):
        n = nspin[0]; nspin[0] += 1
        e(f"s_cmp_gt_u32 {sreg}, {target}"); e(f"s_cbranch_scc1 L_ok{n}")
        lab(f"L_sp{n}")
        if sleep: e(f"s_sleep {sleep}")
        e(f"ds_read_b32 {vtmp}, v2 offset:{off}")
        e("s_sub_u32 s27, s27, 1"); e("s_cbranch_scc1 L_done")
        e("s_waitcnt lgkmcnt(0)")
        e(f"v_readfirstlane_b32 {sreg}, {vtmp}")
        e(f"s_cmp_gt_u32 {sreg}, {target}"); e(f"s_cbranch_scc0 L_sp{n}")
        lab(f"L_ok{n}")
    def one(instr):
        e("s_mov_b64 exec, 1"); e(instr); e("s_mov_b64 exec, -1")
    def gather(label, base, addr, n, slp, slpn):
        for u in range(n): e(f"s_mov_b64 s[{56+2*u}:{57+2*u}], -1")
        if slp:
            e(f"s_branch {label}_go")
            lab(label)
            e(f"s_cmp_lt_u32 s39, {slpn}"); e(f"s_cbranch_scc1 {label}_go")
            e(f"s_sleep {slp}")
            lab(f"{label}_go")
        else: lab(label)
        for u in range(n):
            e(f"s_mov_b64 exec, s[{56+2*u}:{57+2*u}]")
            e(f"global_load_dwordx4 v[{base+4*u}:{base+4*u+3}], {addr(u)} {hpol}")
        e("s_mov_b64 exec, -1")
        e("s_sub_u32 s27, s27, 64"); e("s_cbranch_scc1 L_done")
        e("s_mov_b32 s39, 0")
        for u in range(n):
            e(f"s_waitcnt vmcnt({n-1-u})")
            e(f"v_cmp_ne_u32 vcc, s26, v{base+4*u+1}")
            e(f"v_cmp_ne_u32 s[{56+2*u}:{57+2*u}], s26, v{base+4*u+3}")
            e(f"s_or_b64 s[{56+2*u}:{57+2*u}], s[{56+2*u}:{57+2*u}], vcc")
            e("s_addc_u32 s39, s39, 0")
        e("s_cmp_lg_u32 s39, 0"); e(f"s_cbranch_scc1 {label}")

    L.append(HDR.rstrip("\n"))
    L.append(f"; @launch grid=(256,1,1) block=(320,1,1) lds={LDS_BYTES}")
    L.append('.amdgcn_target "amdgcn-amd-amdhsa--gfx950"')
    L.append(".text"); L.append(f".globl {KNAME}"); L.append(".p2align 8"); L.append(f".type {KNAME},@function"); lab(KNAME)
    c("workgroup = (branch s6, kv head s4, member s5 = half*8 + batch); s7 = wave")
    e("s_cmp_ge_u32 s2, 256"); e("s_cbranch_scc1 L_done")
    e("s_lshr_b32 s6, s2, 7")
    e("s_mul_i32 s3, s6, 40")
    e("s_add_u32 s18, s0, s3"); e("s_addc_u32 s19, s1, 0")
    e("s_load_dwordx8 s[8:15], s[18:19], 0")
    e("s_load_dwordx2 s[24:25], s[0:1], 96")
    stamp(0, False)
    if diagspin: e("s_memrealtime s[98:99]")
    if pf:
        c("pull this kernel's code into L2: one dword per 64B line")
        e("s_getpc_b64 s[22:23]")
        lab("L_pc")
        e("v_lshlrev_b32 v254, 6, v0")
        e("v_min_u32 v254, L_done-L_pc, v254")
        e("global_load_dword v255, v254, s[22:23]")
    e("v_lshrrev_b32 v1, 6, v0")
    e("s_and_b32 s4, s2, 7")
    e("v_readfirstlane_b32 s7, v1")
    e("s_bfe_u32 s5, s2, 0x40003")
    c("s49 = byte offset of this workgroup's 1 MiB of K and of V")
    e("s_and_b32 s49, s5, 7"); e("s_lshl_b32 s49, s49, 3"); e("s_add_u32 s49, s49, s4"); e("s_lshl_b32 s49, s49, 1")
    e("s_lshr_b32 s3, s5, 3"); e("s_add_u32 s49, s49, s3"); e("s_lshl_b32 s49, s49, 20")
    if early:
        e("s_cmp_lg_u32 s7, 4"); e("s_cbranch_scc1 L_ne")
        c("wave 4: start the address translations of the first loads right away")
        e("v_mov_b32 v3, s49"); e("v_mov_b32 v4, 0"); e("v_mov_b32 v5, 0x200000")
        e("s_waitcnt lgkmcnt(0)")
        e(f"global_load_dword v255, v3, s[10:11] {pol}")
        e(f"global_load_dword v255, v4, s[14:15] {pol}"); e(f"global_load_dword v255, v5, s[14:15] {pol}")
        e("global_load_dword v255, v4, s[8:9]")
        lab("L_ne")
    e("s_load_dwordx2 s[16:17], s[18:19], 32")
    e("s_load_dwordx2 s[20:21], s[0:1], 80")
    e("v_and_b32 v0, 63, v0")
    e(f"v_mov_b32 v2, {FL}")
    e("v_mov_b32 v4, 0"); e("v_mov_b32 v5, 0"); e("v_mov_b32 v6, 0"); e("v_mov_b32 v7, 0")
    e("ds_write_b128 v2, v[4:7]"); e("ds_write_b128 v2, v[4:7] offset:16")
    e("s_mov_b32 s27, 0x1000000")
    e("s_cmp_eq_u32 s7, 0"); e("s_cbranch_scc1 L_loader")
    e("s_cmp_eq_u32 s7, 4"); e("s_cbranch_scc1 L_ctl")

    c("---- waves 1..3: q projection of 32 columns for all batches; wave w does k-steps 5(w-1).. (wave 3: 4 steps) ----")
    e("s_sub_u32 s36, s7, 1"); e("s_mul_i32 s36, s36, 5")
    e("v_lshrrev_b32 v5, 2, v0"); e("v_lshlrev_b32 v5, 13, v5")
    e("v_and_b32 v6, 3, v0"); e("v_lshl_add_u32 v5, v6, 4, v5")
    e("s_lshl_b32 s37, s36, 11"); e(f"s_add_u32 s37, s37, {STG}")
    e("s_lshl_b32 s3, s4, 4"); e("s_add_u32 s3, s3, s5"); e("s_lshl_b32 s3, s3, 6")
    e(f"s_sub_u32 s30, {448*8192}, s3"); e("s_mov_b32 s31, 0x20000")
    e("s_lshl_b32 s38, s36, 18")
    e("s_mov_b32 m0, s37")
    e("s_waitcnt lgkmcnt(0)")
    stamp(1)
    e("s_add_u32 s28, s14, s3"); e("s_addc_u32 s29, s15, 0"); e("s_and_b32 s29, s29, 0xffff")
    def qload(s):
        for hlf in range(2):
            e(f"buffer_load_dwordx4 v5, s[28:31], s38 offen {pol} lds")
            e("s_add_u32 m0, m0, 1024"); e(f"s_add_u32 s38, s38, {16*8192}")
    for s in range(4): qload(s)
    e("s_cmp_eq_u32 s7, 3"); e("s_cbranch_scc1 L_q4a")
    qload(4)
    lab("L_q4a")
    stamp(2, False)
    e("s_barrier")
    e("v_and_b32 v3, 15, v0"); e("v_lshrrev_b32 v4, 4, v0")
    e("v_and_b32 v7, 7, v0"); e("v_mul_u32_u24 v7, 896, v7"); e("v_lshl_add_u32 v7, v4, 4, v7")
    e("s_mov_b32 s32, s8"); e("s_and_b32 s33, s9, 0xffff"); e(f"s_mov_b32 s34, {8*896}"); e("s_mov_b32 s35, 0x20000")
    e("s_lshl_b32 s39, s36, 6")
    for s in range(5):
        e(f"buffer_load_dwordx4 v[{12+4*s}:{15+4*s}], v7, s[32:35], s39 offen offset:{s*64}")
    e("s_lshl_b32 s40, s6, 8"); e("s_add_u32 s42, s24, s40"); e("s_addc_u32 s43, s25, 0")
    e("s_load_dword s26, s[42:43], 0")
    e("v_lshrrev_b32 v8, 2, v3"); e("v_lshl_add_u32 v8, v4, 3, v8"); e("v_lshlrev_b32 v8, 6, v8")
    e("v_lshl_add_u32 v8, v6, 3, v8"); e("v_add_u32 v8, s37, v8")
    e("v_lshlrev_b32 v9, 5, v0"); e("v_add_u32 v10, s37, v9")
    e("s_getreg_b32 s51, hwreg(HW_REG_XCC_ID, 0, 3)")
    e("s_lshl_b32 s3, s6, 3"); e("s_add_u32 s44, s3, s4")
    e("s_waitcnt vmcnt(0)")
    stamp(3)
    for s in range(5):
        for t in range(2):
            r = 32 + (s*2 + t)*4
            e(f"ds_read_b64_tr_b16 v[{r}:{r+1}], v8 offset:{s*2048 + t*32}")
            e(f"ds_read_b64_tr_b16 v[{r+2}:{r+3}], v8 offset:{s*2048 + t*32 + 256}")
    def qmfma(s):
        for t in range(2):
            r = 32 + (s*2 + t)*4
            cc = "0" if s == 0 else f"v[{72+4*t}:{75+4*t}]"
            e(f"v_mfma_f32_16x16x32_bf16 v[{72+4*t}:{75+4*t}], v[{r}:{r+3}], v[{12+4*s}:{15+4*s}], {cc}")
    e("s_waitcnt lgkmcnt(0)")
    for s in range(4): qmfma(s)
    e("s_cmp_eq_u32 s7, 3"); e("s_cbranch_scc1 L_q4b")
    qmfma(4)
    lab("L_q4b")
    e("s_add_u32 s26, s26, 1")
    e("v_mov_b32 v11, 1"); e("v_mov_b32 v12, s26")
    e("s_lshl_b32 s45, s26, 3"); e("s_or_b32 s45, s45, s51")
    e("s_nop 4")
    e("ds_write_b128 v10, v[72:75]"); e("ds_write_b128 v10, v[76:79] offset:16")
    e("s_mov_b64 exec, 1")
    e("ds_write_b32 v2, v12 offset:12")
    e("s_waitcnt lgkmcnt(0)")
    e("ds_add_rtn_u32 v11, v2, v11 offset:8")
    e("s_mov_b64 exec, -1")
    c("lane l -> (b = l>>3, tile = (l>>2)&1, g = l&3): partial at ((g*16+b)*32 + tile*16)")
    e("v_lshrrev_b32 v13, 3, v0"); e("v_lshl_add_u32 v9, v6, 4, v13"); e("v_lshlrev_b32 v9, 5, v9")
    e("v_and_b32 v14, 4, v0"); e("v_lshl_add_u32 v9, v14, 2, v9"); e(f"v_add_u32 v9, {STG}, v9")
    e("s_waitcnt lgkmcnt(0)")
    e("v_readfirstlane_b32 s41, v11")
    e("s_cmp_lg_u32 s41, 2"); e("s_cbranch_scc1 L_qdone")
    c("last of the three: add the partials, publish {2 x bf16, tag} granules")
    e("ds_read_b128 v[16:19], v9"); e(f"ds_read_b128 v[20:23], v9 offset:{5*2048}"); e(f"ds_read_b128 v[28:31], v9 offset:{10*2048}")
    e("s_lshl_b32 s3, s44, 14"); e("s_lshl_b32 s41, s5, 7"); e("s_add_u32 s3, s3, s41"); e(f"s_add_u32 s3, s3, {WS_Q}")
    e("v_and_b32 v11, 7, v0"); e("v_lshlrev_b32 v11, 4, v11"); e("v_lshl_add_u32 v11, v13, 11, v11"); e("v_add_u32 v11, s3, v11")
    e("v_mov_b32 v25, s45"); e("v_mov_b32 v27, s45")
    e("s_waitcnt lgkmcnt(0)")
    for r in range(4): e(f"v_add_f32 v{16+r}, v{16+r}, v{20+r}")
    for r in range(4): e(f"v_add_f32 v{16+r}, v{16+r}, v{28+r}")
    e("v_cvt_pk_bf16_f32 v24, v16, v17"); e("v_cvt_pk_bf16_f32 v26, v18, v19")
    e(f"global_store_dwordx4 v11, v[24:27], s[24:25] {hpol}")
    lab("L_qdone")
    stamp(5)
    e("s_cmp_lg_u32 s7, 1"); e("s_cbranch_scc1 L_tail")
    e("s_branch L_comp")

    lab("L_loader")
    c("---- wave 0: K then V through the LDS ring (bank swizzle on the source side), then final reducer ----")
    e("v_lshrrev_b32 v3, 5, v0"); e("v_and_b32 v4, 31, v0"); e("v_lshlrev_b32 v5, 9, v3"); e("v_xor_b32 v6, v4, v3")
    for g in range(8):
        e(f"v_xor_b32 v7, {2*g}, v6"); e(f"v_lshl_add_u32 v{8+g}, v7, 4, v5")
    e("s_mov_b32 s30, 0x100000"); e("s_mov_b32 s31, 0x20000")
    e("s_mov_b32 s41, 0"); e("s_mov_b32 m0, 0")
    e("s_waitcnt lgkmcnt(0)")
    stamp(1)
    e("s_add_u32 s28, s10, s49"); e("s_addc_u32 s29, s11, 0"); e("s_and_b32 s29, s29, 0xffff")
    wid = [0]
    def vwait(p):
        n = wid[0]; wid[0] += 1
        def tree(lo, hi, last):
            if lo == hi:
                e(f"s_waitcnt vmcnt({lo})")
                if not last: e(f"s_branch L_wo{n}")
                return
            mid = (lo + hi + 1) // 2
            e(f"s_cmp_ge_u32 s{44+p}, {mid}"); e(f"s_cbranch_scc1 L_w{n}_{mid}_{hi}")
            tree(lo, mid-1, False)
            lab(f"L_w{n}_{mid}_{hi}")
            tree(mid, hi, last)
        tree(WLO, WHI, True)
        lab(f"L_wo{n}")
    def step():
        e("s_add_u32 s41, s41, 0x1000"); e("s_and_b32 s41, s41, 0xfffff"); e("s_and_b32 m0, s41, 0x1ffff")
    if PRE == 0: e("s_barrier")
    for g in range(16):
        e(f"buffer_load_dwordx4 v{8 + g % 8}, s[28:31], s41 offen offset:{(g%4)*1024} {pol} lds")
        if g == PRE - 1: e("s_barrier")
        if g % 4 == 3: step(); e("s_nop 0")
    e("v_lshlrev_b32 v6, 1, v3"); e("v_xor_b32 v6, v4, v6")
    for g in range(4):
        e(f"v_xor_b32 v7, {4*g}, v6"); e(f"v_lshl_add_u32 v{16+g}, v7, 4, v5")
    e("s_add_u32 s32, s12, s49"); e("s_addc_u32 s33, s13, 0"); e("s_and_b32 s33, s33, 0xffff")
    e("s_mov_b32 s34, 0x100000"); e("s_mov_b32 s35, 0x20000")
    e("s_mov_b32 s37, 1")
    e("v_add_u32 v22, 4, v2")
    for p in range(4): e(f"s_mov_b32 s{44+p}, {WI // 4}")
    e("s_mov_b32 s48, 0")
    def loop(label, srd, vb, nv, end):
        lab(label)
        for g in range(16):
            e(f"buffer_load_dwordx4 v{vb + g % nv}, {srd}, s41 offen offset:{(g%4)*1024} {pol} lds")
            if g % 4 != 3: continue
            step()
            if g == 15: e("s_waitcnt lgkmcnt(0)")
            e("s_lshr_b32 s39, s48, 4"); e("v_mov_b32 v21, s39"); one("ds_max_u32 v2, v21")
            if g == 7:
                e("ds_read_b32 v20, v2 offset:4"); e("ds_read_b64 v[24:25], v2 offset:24"); e("s_memrealtime s[100:101]")
            if g < 15:
                e("s_lshl_b32 s48, s37, 4"); e(f"s_add_u32 s48, s48, {g+1}"); e(f"s_sub_u32 s48, s48, s{44 + g//4}"); e("s_max_i32 s48, s48, 0")
                vwait(g // 4)
        e("v_mov_b32 v23, s100"); one("ds_write_b32 v22, v23 offset:256"); e("v_add_u32 v22, 4, v22")
        c("loads in flight follow this workgroup's lag behind the common progress line A + j*S/16")
        e("v_readfirstlane_b32 s39, v24"); e("v_readfirstlane_b32 s40, v25")
        e("s_sub_u32 s39, s100, s39"); e("s_mul_i32 s36, s40, s37"); e("s_lshr_b32 s36, s36, 4"); e("s_sub_u32 s39, s39, s36")
        e("s_max_i32 s39, s39, -1000"); e("s_min_i32 s39, s39, 1000")
        if GAIN2 != GAIN and end == 128:
            e(f"s_cmp_ge_u32 s37, {J2}"); e(f"s_cselect_b32 s36, {GAIN2 - GAIN}, 0"); e(f"s_add_u32 s36, s36, {GAIN}"); e("s_mul_i32 s39, s39, s36")
        else: e(f"s_mul_i32 s39, s39, {GAIN}")
        e("s_ashr_i32 s39, s39, 8")
        e(f"s_add_i32 s39, s39, {W0}"); e("s_cmp_eq_u32 s40, 0"); e(f"s_cselect_b32 s39, {WI}, s39")
        e(f"s_max_i32 s39, s39, {4*WLO}"); e(f"s_min_i32 s39, s39, {4*WHI}")
        if prog: e("v_mov_b32 v23, s39"); one("ds_write_b32 v22, v23 offset:764")
        for p, add in enumerate((0, 2, 1, 3)):
            if add: e(f"s_add_u32 s{44+p}, s39, {add}"); e(f"s_lshr_b32 s{44+p}, s{44+p}, 2")
            else: e(f"s_lshr_b32 s{44+p}, s39, 2")
        e("v_readfirstlane_b32 s38, v20")
        e("s_add_u32 s37, s37, 1")
        e("s_add_u32 s38, s38, 8"); e("s_cmp_gt_u32 s38, s37"); e(f"s_cbranch_scc1 {label}_free")
        c("ring full: report everything, wait for a slot")
        e("s_waitcnt vmcnt(0)")
        e("v_mov_b32 v21, s37"); one("ds_max_u32 v2, v21")
        lab(f"{label}_sp")
        e("ds_read_b32 v20, v2 offset:4")
        e("s_sub_u32 s27, s27, 1"); e("s_cbranch_scc1 L_done")
        e("s_waitcnt lgkmcnt(0)")
        e("v_readfirstlane_b32 s38, v20")
        e("s_add_u32 s38, s38, 8"); e("s_cmp_gt_u32 s38, s37"); e(f"s_cbranch_scc0 {label}_sp")
        lab(f"{label}_free")
        e("s_lshl_b32 s48, s37, 4"); e("s_sub_u32 s48, s48, s47"); e("s_max_i32 s48, s48, 0")
        vwait(3)
        e(f"s_cmp_lt_u32 s37, {end}"); e(f"s_cbranch_scc1 {label}")
    loop("L_kload", "s[28:31]", 8, 8, 64)
    loop("L_vload", "s[32:35]", 16, 4, 128)
    e("ds_read_b32 v20, v2 offset:12")
    e("v_mov_b32 v21, 126"); one("ds_max_u32 v2, v21")
    c("final reducer set-up: rho = hkv*16+member < 112 : tile = rho>>2, batch quad = (rho>>1)&1, column half = rho&1")
    e("s_lshl_b32 s47, s4, 4"); e("s_add_u32 s47, s47, s5")
    e("s_mul_i32 s3, s6, 112"); e("s_add_u32 s3, s3, s47"); e("s_lshl_b32 s3, s3, 12"); e(f"s_add_u32 s3, s3, {WS_Y}")
    e("v_mov_b32 v21, 127")
    e("s_waitcnt vmcnt(16)"); one("ds_max_u32 v2, v21")
    e("v_lshlrev_b32 v14, 4, v0"); e("v_add_u32 v14, s3, v14")
    e("s_bfe_u32 s3, s47, 0x10001"); e("s_mul_i32 s3, s3, 7168"); e("s_mul_i32 s39, s6, 896"); e("s_add_u32 s3, s3, s39")
    e("s_lshr_b32 s39, s47, 2"); e("s_lshl_b32 s39, s39, 5"); e("s_add_u32 s3, s3, s39")
    e("s_and_b32 s39, s47, 1"); e("s_lshl_b32 s39, s39, 4"); e("s_add_u32 s3, s3, s39")
    e("v_lshrrev_b32 v16, 4, v0"); e("v_mul_u32_u24 v16, 1792, v16"); e("v_and_b32 v17, 7, v0"); e("v_lshl_add_u32 v16, v17, 1, v16"); e("v_add_u32 v16, s3, v16")
    e("s_movk_i32 s50, 0xfff")
    e("s_lshl_b32 s3, s6, 8"); e("s_add_u32 s42, s24, s3"); e("s_addc_u32 s43, s25, 0")
    e("s_waitcnt lgkmcnt(0)")
    e("v_mov_b32 v21, 128")
    e("v_readfirstlane_b32 s26, v20")
    e("s_mov_b64 exec, 1"); e("s_waitcnt vmcnt(0)"); e("ds_max_u32 v2, v21"); e("s_mov_b64 exec, -1")
    stamp(2)
    wend = 'L_w0end' if stamps or diagspin else 'L_done'
    e("s_cmp_ge_u32 s47, 112"); e(f"s_cbranch_scc1 {wend}")
    OL = 24
    e("s_mov_b32 s38, 0")
    c("start looking once this workgroup's own partial sums were acknowledged")
    for u in range(4): e(f"s_mov_b64 s[{56+2*u}:{57+2*u}], -1")
    lds_wait_gt("s38", 20, str(YG), "v20")
    c("partial sums are f32 whose low 12 bits carry the tag")
    lab("L_ypoll")
    for u in range(4):
        e(f"s_mov_b64 exec, s[{56+2*u}:{57+2*u}]")
        e(f"global_load_dwordx4 v[{OL+4*u}:{OL+4*u+3}], v14, s[24:25] offset:{u*1024} {hpol}")
    e("s_mov_b64 exec, -1")
    e("s_sub_u32 s27, s27, 64"); e("s_cbranch_scc1 L_done")
    for u in range(4):
        e(f"s_waitcnt vmcnt({3-u})")
        e(f"v_bitop3_b32 v20, v{OL+4*u}, v{OL+4*u+1}, s26 bitop3:0x7e")
        e(f"v_bitop3_b32 v21, v{OL+4*u+2}, v{OL+4*u+3}, s26 bitop3:0x7e")
        e("v_bitop3_b32 v20, v20, v21, s50 bitop3:0xa8")
        e(f"v_cmp_ne_u32 s[{56+2*u}:{57+2*u}], 0, v20")
        if u == 1:
            for r in range(4): e(f"v_add_f32 v{40+r}, v{OL+r}, v{OL+4+r}")
            e("s_or_b64 s[52:53], s[56:57], s[58:59]")
        if u == 2:
            for r in range(4): e(f"v_add_f32 v{40+r}, v{40+r}, v{OL+8+r}")
            e("s_or_b64 s[52:53], s[52:53], s[60:61]")
    for r in range(4): e(f"v_add_f32 v{40+r}, v{40+r}, v{OL+12+r}")
    e("s_or_b64 s[52:53], s[52:53], s[62:63]"); e("s_cbranch_scc1 L_ypoll")
    stamp(3)
    e("v_permlane32_swap_b32 v40, v42"); e("v_permlane32_swap_b32 v41, v43")
    e("v_add_f32 v40, v40, v42"); e("v_add_f32 v41, v41, v43")
    e("s_nop 1"); e("v_permlane16_swap_b32 v40, v41"); e("v_add_f32 v40, v40, v41")
    e("s_nop 1"); e("v_add_f32_dpp v40, v40, v40 row_ror:8 row_mask:0xf bank_mask:0xf")
    e("v_cvt_pk_bf16_f32 v40, v40, v40")
    e("s_mov_b32 exec_lo, 0x00ff00ff"); e("s_mov_b32 exec_hi, 0x00ff00ff")
    e("global_store_short v16, v40, s[20:21]")
    e("s_cmp_lg_u32 s47, 0"); e(f"s_cbranch_scc1 {wend}")
    c("every workgroup of this branch has used the epoch by now: advance it")
    e("s_mov_b64 exec, 1")
    e("v_mov_b32 v20, 0"); e("v_mov_b32 v21, s26")
    e(f"global_store_dword v20, v21, s[42:43] {hpol}")
    if stamps or diagspin:
        lab("L_w0end")
        if diagspin:
            e(f"s_add_u32 s98, s98, {diagspin*100}")
            lab("L_dsp")
            e("s_memrealtime s[96:97]"); e("s_waitcnt lgkmcnt(0)")
            e("s_sub_u32 s96, s96, s98"); e("s_cmp_lt_i32 s96, 0"); e("s_cbranch_scc1 L_dsp")
        if stamps:
            e("s_waitcnt vmcnt(0)")
            stamp(4)
            e("s_cmp_ge_u32 s47, 112"); e("s_cselect_b32 s78, s76, s78")
            e("s_mov_b64 exec, -1")
            e("v_lshlrev_b32 v22, 3, v0"); e("v_add_u32 v23, v22, v2"); e("ds_read_b64 v[24:25], v23 offset:256")
            e("s_lshl_b32 s96, s2, 9"); e(f"s_add_u32 s96, s96, {WS_ST + 0x10000}"); e("v_add_u32 v22, s96, v22")
            e("ds_read_b64 v[26:27], v23 offset:768")
            e("s_waitcnt lgkmcnt(0)"); e("global_store_dwordx2 v22, v[24:25], s[24:25]")
            e("v_add_u32 v22, 0x40000, v22"); e("global_store_dwordx2 v22, v[26:27], s[24:25]")
            dump([(0,0),(1,1),(2,2),(3,18),(4,19)])
    e("s_endpgm")

    lab("L_ctl")
    c("---- wave 4: every CK units 16 workgroups publish when they got there; their mean anchors the common progress line ----")
    e("s_waitcnt lgkmcnt(0)")
    e("s_load_dword s22, s[24:25], 0")
    e("s_barrier")
    e("s_and_b32 s3, s2, 7"); e("s_lshl_b32 s41, s6, 3"); e("s_add_u32 s3, s3, s41"); e("s_lshl_b32 s3, s3, 3")
    e(f"s_add_u32 s3, s3, {WS_T}"); e("v_mov_b32 v10, s3")
    e("v_and_b32 v3, 15, v0"); e("v_lshlrev_b32 v11, 3, v3"); e(f"v_add_u32 v11, {WS_T - DL*4352}, v11")
    e("s_mov_b32 s36, 0"); e("s_mov_b32 s50, 1"); e(f"s_mov_b32 s53, {S0}"); e("s_mov_b32 s52, 0")
    e("s_waitcnt lgkmcnt(0)")
    e("s_add_u32 s22, s22, 1"); e("v_mov_b32 v19, s22")
    lab("L_c")
    e(f"s_mul_i32 s49, s50, {CK}")
    lds_wait_gt("s36", 0, "s49", "v20", sleep=8)
    e("s_lshl_b32 s41, s49, 2"); e("v_add_u32 v21, s41, v2")
    e("ds_read_b32 v18, v21 offset:256")
    e("v_add_u32 v10, 4352, v10"); e("v_add_u32 v11, 4352, v11")
    e("s_lshr_b32 s41, s2, 3"); e("s_xor_b32 s41, s41, s50"); e("s_and_b32 s41, s41, 15")
    e("s_waitcnt lgkmcnt(0)")
    e("s_cbranch_scc1 L_c_np")
    one(f"global_store_dwordx2 v10, v[18:19], s[24:25] {hpol}")
    lab("L_c_np")
    if touch:
        e(f"s_cmp_lg_u32 s50, {touch}"); e("s_cbranch_scc1 L_c_nt")
        c("translations the last phase needs")
        e("s_mov_b64 exec, 1")
        e("v_mov_b32 v12, 0x2f0000"); e(f"global_load_dword v13, v12, s[24:25] {pol}")
        e("v_mov_b32 v12, 0"); e(f"global_load_dword v13, v12, s[20:21] {pol}")
        e("s_mov_b64 exec, -1")
        lab("L_c_nt")
    e(f"s_cmp_le_u32 s50, {DL}"); e("s_cbranch_scc1 L_c_nx")
    e(f"global_load_dwordx2 v[12:13], v11, s[24:25] {hpol}")
    e("s_waitcnt vmcnt(0)")
    e("v_cmp_eq_u32 vcc, s22, v13"); e("v_sub_u32 v12, v12, v18"); e("s_nop 0"); e("v_cndmask_b32 v12, 0, v12, vcc")
    for sh in (8, 4, 2, 1):
        e("s_nop 1"); e(f"v_add_u32_dpp v12, v12, v12 row_ror:{sh} row_mask:0xf bank_mask:0xf")
    e("v_ashrrev_i32 v12, 4, v12"); e("v_add_u32 v12, v12, v18"); e("s_nop 0")
    e("v_readfirstlane_b32 s41, v12")
    e(f"s_cmp_eq_u32 s50, {DL+1}"); e("s_cbranch_scc1 L_c_fs")
    e("s_sub_u32 s3, s41, s52"); e(f"s_lshl_b32 s3, s3, {4 - (CK.bit_length()-1)}")
    e("s_sub_u32 s3, s3, s53"); e(f"s_ashr_i32 s3, s3, {SH}"); e("s_add_u32 s53, s53, s3")
    e("s_max_i32 s53, s53, 1")
    lab("L_c_fs")
    e("s_mov_b32 s52, s41")
    e(f"s_sub_u32 s3, s49, {DL*CK}"); e("s_mul_i32 s3, s3, s53"); e("s_lshr_b32 s3, s3, 4"); e("s_sub_u32 s3, s41, s3")
    e("v_mov_b32 v20, s3"); e("v_mov_b32 v21, s53")
    one("ds_write_b64 v2, v[20:21] offset:24")
    lab("L_c_nx")
    e("s_add_u32 s50, s50, 1"); e(f"s_cmp_lt_u32 s50, {(123 // CK) + 1}"); e("s_cbranch_scc1 L_c")
    e("s_endpgm")

    lab("L_comp")
    c("---- wave 1: scores, softmax, PV ----")
    e("s_lshl_b32 s3, s44, 3"); e("s_and_b32 s41, s5, 7"); e("s_add_u32 s3, s3, s41"); e("s_lshl_b32 s3, s3, 11")
    e(f"s_add_u32 s3, s3, {WS_Q}")
    e("v_lshlrev_b32 v5, 4, v0"); e("v_add_u32 v5, s3, v5")
    e("v_lshlrev_b32 v6, 9, v3"); e("v_xor_b32 v7, v4, v3")
    for k in range(4):
        e(f"v_xor_b32 v8, {4*k}, v7"); e(f"v_lshl_add_u32 v{40+k}, v8, 4, v6")
    e("v_lshrrev_b32 v6, 2, v0")
    e("v_and_b32 v7, 7, v6"); e("v_and_b32 v8, 3, v0"); e("v_lshlrev_b32 v8, 3, v8"); e("v_lshl_add_u32 v8, v6, 9, v8")
    for k in range(8):
        e(f"v_xor_b32 v9, {k}, v7"); e(f"v_lshl_add_u32 v{48+k}, v9, 5, v8")
    e("v_and_b32 v6, 1, v0")
    e("v_lshlrev_b32 v38, 13, v6"); e("v_lshl_add_u32 v38, v4, 5, v38"); e(f"v_add_u32 v38, {S_}, v38")
    e("v_lshlrev_b32 v39, 12, v6"); e("v_lshl_add_u32 v39, v4, 4, v39"); e(f"v_add_u32 v39, {P_}, v39")
    e("v_lshlrev_b32 v37, 9, v6"); e("v_lshl_add_u32 v37, v4, 4, v37"); e(f"v_add_u32 v37, {QB}, v37")
    e("v_lshlrev_b32 v36, 3, v0"); e(f"v_add_u32 v36, {QB}, v36")
    e("v_mov_b32 v35, 0xff800000")
    e("s_mov_b32 s46, 0x00030003"); e("s_mov_b32 s47, 0x00030003")
    KF = 96; D1, D2 = 24, 28; QF = 64
    order = [(T, i) for i in range(8) for T in range(2)]
    def kmfma(base, n):
        T, i = order[n]; d = D1 if T == 0 else D2
        cc = "0" if i == 0 else f"v[{d}:{d+3}]"
        e(f"v_mfma_f32_16x16x32_bf16 v[{d}:{d+3}], v[{base+4*n}:{base+4*n+3}], v[{QF+4*i}:{QF+4*i+3}], {cc}")
    def kreads(base):
        for n, (T, i) in enumerate(order):
            e(f"ds_read_b128 v[{base+4*n}:{base+4*n+3}], v{44 + (i&3)} offset:{(i>>2)*256 + T*8192}")
    def kpost(nop):
        e("s_mov_b64 exec, s[46:47]")
        e(f"s_nop {nop}")
        e(f"ds_write_b128 v38, v[{D1}:{D1+3}]"); e(f"ds_write_b128 v38, v[{D2}:{D2+3}] offset:16")
        e("s_mov_b64 exec, -1")
        e(f"v_max3_f32 v35, v35, v{D1}, v{D1+1}"); e(f"v_max3_f32 v35, v35, v{D1+2}, v{D1+3}")
        e(f"v_max3_f32 v35, v35, v{D2}, v{D2+1}"); e(f"v_max3_f32 v35, v35, v{D2+2}, v{D2+3}")
        e("v_add_u32 v38, 128, v38")
    e("s_mov_b32 s38, 0")
    c("q is not here yet: move the first K tiles into registers so the ring keeps filling")
    for r in range(RPRE):
        for k in range(4): e(f"v_add_u32 v{44+k}, {r*16384}, v{40+k}")
        e(f"v_mov_b32 v11, {r+1}")
        lds_wait_gt("s38", 0, str(r), "v10")
        kreads(KF + 64*r)
        e("s_mov_b64 exec, 1"); e("s_waitcnt lgkmcnt(0)"); e("ds_write_b32 v2, v11 offset:4"); e("s_mov_b64 exec, -1")
    if QW >= RPRE: lds_wait_gt("s38", 0, str(QW), "v10")
    stamp(6)
    lab("L_qpoll")
    e(f"global_load_dwordx4 v[12:15], v5, s[24:25] {hpol}")
    e(f"global_load_dwordx4 v[16:19], v5, s[24:25] offset:1024 {hpol}")
    e("s_sub_u32 s27, s27, 64"); e("s_cbranch_scc1 L_done")
    e("s_waitcnt vmcnt(0)")
    e("v_xor_b32 v13, s45, v13"); e("v_xor_b32 v15, s45, v15"); e("v_xor_b32 v17, s45, v17"); e("v_xor_b32 v19, s45, v19")
    e("v_or3_b32 v13, v13, v15, v17"); e("v_or_b32 v13, v13, v19")
    e("v_cmp_lt_u32 vcc, 7, v13"); e("s_cbranch_vccnz L_qpoll")
    e("v_cmp_ne_u32 s[54:55], 0, v13")
    e("v_mov_b32 v13, v14"); e("v_mov_b32 v17, v18")
    e("ds_write_b64 v36, v[12:13]"); e("ds_write_b64 v36, v[16:17] offset:512")
    e("s_waitcnt lgkmcnt(0)")
    for i in range(8): e(f"ds_read_b128 v[{QF+4*i}:{QF+4*i+3}], v37 offset:{i*64}")
    stamp(7)
    e(f"s_mov_b32 s36, {RPRE}"); e(f"s_mov_b32 s40, {RPRE*16384}")
    e("s_waitcnt lgkmcnt(0)")
    for r in range(RPRE):
        for n in range(16): kmfma(KF + 64*r, n)
        kpost(7)
    lab("L_kloop")
    lds_wait_gt("s38", 0, "s36", "v12")
    for k in range(4): e(f"v_add_u32 v{44+k}, s40, v{40+k}")
    kreads(KF)
    e("s_add_u32 s36, s36, 1"); e("v_mov_b32 v13, s36")
    for n in range(16):
        if n % 2 == 0: e(f"s_waitcnt lgkmcnt({14-n})")
        kmfma(KF, n)
    e("s_mov_b64 exec, 1")
    e("ds_write_b32 v2, v13 offset:4")
    e("s_add_u32 s40, s40, 0x4000"); e("s_and_b32 s40, s40, 0x1ffff")
    kpost(3)
    e("s_cmp_lt_u32 s36, 64"); e("s_cbranch_scc1 L_kloop")
    stamp(8)
    c("softmax over this half of the keys: M = true max, p = exp2(c*s - c*M), l = sum p")
    e("v_mov_b32 v12, v35"); e("s_nop 1"); e("v_permlane32_swap_b32 v35, v12"); e("v_max_f32 v35, v35, v12")
    e("v_mov_b32 v12, v35"); e("s_nop 1"); e("v_permlane16_swap_b32 v35, v12"); e("v_max_f32 v35, v35, v12")
    e("s_nop 0")
    e("v_readlane_b32 s48, v35, 0"); e("v_readlane_b32 s49, v35, 1")
    cbits = st.unpack("<I", st.pack("<f", math.log2(math.e) / 16.0))[0]
    e(f"s_mov_b32 s50, {cbits:#x}")
    e("s_mov_b32 s52, 0"); e("s_mov_b32 s53, -1")
    e("v_mov_b32 v32, s48"); e("v_mov_b32 v12, s49"); e("v_cndmask_b32 v32, v32, v12, s[52:53]")
    e("v_mul_f32 v33, s50, v32"); e("v_sub_f32 v33, 0, v33")
    e("v_lshrrev_b32 v12, 5, v0"); e("v_and_b32 v13, 31, v0")
    e("v_lshlrev_b32 v14, 13, v12"); e("v_lshl_add_u32 v14, v13, 5, v14"); e(f"v_add_u32 v14, {S_}, v14")
    e("v_lshlrev_b32 v15, 12, v12"); e("v_lshl_add_u32 v15, v13, 4, v15"); e(f"v_add_u32 v15, {P_}, v15")
    e("v_mov_b32 v34, 0")
    e("s_mov_b32 s41, 2")
    e("s_waitcnt lgkmcnt(0)")
    lab("L_exp")
    for it in range(4):
        r = KF + 8*it
        e(f"ds_read_b128 v[{r}:{r+3}], v14 offset:{it*1024}")
        e(f"ds_read_b128 v[{r+4}:{r+7}], v14 offset:{it*1024+16}")
    for it in range(4):
        r = KF + 8*it
        e(f"s_waitcnt lgkmcnt({6 - it})")
        for k in range(8): e(f"v_fma_f32 v{r+k}, v{r+k}, s50, v33")
        for k in range(8): e(f"v_exp_f32 v{r+k}, v{r+k}")
        e("s_nop 0")
        for k in range(4): e(f"v_cvt_pk_bf16_f32 v{16+k}, v{r+2*k}, v{r+2*k+1}")
        e(f"ds_write_b128 v15, v[16:19] offset:{it*512}")
        for k in range(0, 8, 2): e(f"v_add_f32 v{r+k}, v{r+k}, v{r+k+1}")
        e(f"v_add_f32 v{r}, v{r}, v{r+2}"); e(f"v_add_f32 v{r+4}, v{r+4}, v{r+6}")
        e(f"v_add_f32 v{r}, v{r}, v{r+4}"); e(f"v_add_f32 v34, v34, v{r}")
    e("v_add_u32 v14, 4096, v14"); e("v_add_u32 v15, 2048, v15")
    e("s_sub_u32 s41, s41, 1"); e("s_cmp_lg_u32 s41, 0")
    e("s_waitcnt lgkmcnt(0)")
    e("s_cbranch_scc1 L_exp")
    for sh in (8, 4, 2, 1):
        e("s_nop 1"); e(f"v_add_f32_dpp v34, v34, v34 row_ror:{sh} row_mask:0xf bank_mask:0xf")
    e("v_mov_b32 v12, v34"); e("s_nop 1"); e("v_permlane16_swap_b32 v34, v12"); e("v_add_f32 v34, v34, v12")
    e("s_lshl_b32 s3, s44, 4"); e("s_add_u32 s41, s3, s5"); e("s_lshl_b32 s41, s41, 7"); e(f"s_add_u32 s41, s41, {WS_ML}")
    e("s_xor_b32 s45, s41, 1024")
    e("v_lshrrev_b32 v12, 5, v0"); e("v_lshlrev_b32 v12, 4, v12")
    e("v_add_u32 v31, s45, v12"); e("v_add_u32 v12, s41, v12")
    e("v_mov_b32 v16, v32"); e("v_mov_b32 v17, s26"); e("v_mov_b32 v18, v34"); e("v_mov_b32 v19, s26")
    e("s_mov_b32 exec_lo, 1"); e("s_mov_b32 exec_hi, 1")
    if local:
        e("s_cmp_eq_u64 s[54:55], 0"); e("s_cbranch_scc0 L_mlg")
        e("global_store_dwordx4 v12, v[16:19], s[24:25]"); e("s_branch L_mld")
        lab("L_mlg")
    e(f"global_store_dwordx4 v12, v[16:19], s[24:25] {hpol}")
    lab("L_mld")
    e("s_mov_b64 exec, -1")
    AF = 64; AC = 20
    for r in range(32): e(f"v_mov_b32 v{AF+r}, 0")
    for r in range(8): e(f"v_mov_b32 v{AC+r}, 0")
    for k in range(8):
        m = 0x00030003 << (2*k)
        e(f"s_mov_b32 s{56+2*k}, {m:#x}"); e(f"s_mov_b32 s{57+2*k}, {m:#x}")
    stamp(9)
    e(f"s_mov_b32 s39, {64+XCH}")
    lab("L_vloop")
    c("A operand k holds p in rows 2k,2k+1 only, so 8 column tiles share one accumulator")
    for k in range(8):
        e(f"s_mov_b64 exec, s[{56+2*k}:{57+2*k}]")
        e(f"ds_read_b128 v[{AF+4*k}:{AF+4*k+3}], v39")
    e("s_mov_b64 exec, -1")
    e("v_add_u32 v39, 64, v39")
    for k in range(8): e(f"v_add_u32 v{4+k}, s40, v{48+k}")
    lds_wait_gt("s38", 0, "s36", "v12")
    cts = [ct for k in range(8) for ct in (k, k+8)]
    for n in range(16 + DIST):
        if n < 16:
            ct = cts[n]; r = KF + 4*n
            e(f"ds_read_b64_tr_b16 v[{r}:{r+1}], v{4 + (ct&7)} offset:{(ct>>3)*256}")
            e(f"ds_read_b64_tr_b16 v[{r+2}:{r+3}], v{4 + (ct&7)} offset:{(ct>>3)*256 + 8192}")
        if n == 2:
            e("s_add_u32 s36, s36, 1"); e("v_mov_b32 v13, s36")
            e("s_add_u32 s40, s40, 0x4000"); e("s_and_b32 s40, s40, 0x1ffff")
        if n >= DIST:
            k = n - DIST
            e(f"s_waitcnt lgkmcnt({2 * (min(n, 15) - k)})")
            ct = cts[k]; r = KF + 4*k; d = AC + 4*(ct >> 3); a = AF + 4*(ct & 7)
            e(f"v_mfma_f32_16x16x32_bf16 v[{d}:{d+3}], v[{a}:{a+3}], v[{r}:{r+3}], v[{d}:{d+3}]")
    one("ds_write_b32 v2, v13 offset:4")
    e("s_cmp_lt_u32 s36, s39"); e("s_cbranch_scc1 L_vloop")
    e("s_cmp_lg_u32 s36, 128"); e("s_cbranch_scc1 L_mlpoll")
    stamp(10, False)
    e("s_cmp_eq_u64 s[54:55], 0")
    e("s_nop 0")
    for h in range(2):
        for a in range(2):
            e(f"v_mul_f32 v{AC+4*a+h}, s{48+h}, v{AC+4*a+h}"); e(f"v_mul_f32 v{AC+4*a+h+2}, s{48+h}, v{AC+4*a+h+2}")
    for h in range(2):
        for a in range(2): e(f"v_cvt_pk_bf16_f32 v{40+4*h+2*a}, v{AC+4*a+h}, v{AC+4*a+h+2}")
    if local:
        e("s_cbranch_scc0 L_opubg")
        c("whole group on this XCD: its L2 is the common point, plain stores suffice")
        e("global_store_dwordx4 v30, v[40:43], s[24:25]"); e("global_store_dwordx4 v31, v[44:47], s[24:25]")
        if stamps: e("s_branch L_opubd")
        else: e("s_endpgm")
        lab("L_opubg")
    e(f"global_store_dwordx4 v30, v[40:43], s[24:25] {hpol}"); e(f"global_store_dwordx4 v31, v[44:47], s[24:25] {hpol}")
    lab("L_opubd")
    stamp(11)
    dump([(5,8),(6,9),(7,10),(8,11),(9,12),(10,13),(11,14)])
    e("s_endpgm")
    c("mid-way: fetch the other half's (M,l), form this half's final scale")
    lab("L_mlpoll")
    e(f"global_load_dwordx4 v[16:19], v31, s[24:25] {hpol}")
    e("s_sub_u32 s27, s27, 64"); e("s_cbranch_scc1 L_done")
    e("s_waitcnt vmcnt(0)")
    e("v_xor_b32 v17, s26, v17"); e("v_xor_b32 v19, s26, v19"); e("v_or_b32 v17, v17, v19")
    e("v_cmp_ne_u32 vcc, 0, v17"); e("s_cbranch_vccnz L_mlpoll")
    e("v_max_f32 v17, v32, v16")
    e("v_sub_f32 v32, v32, v17"); e("v_sub_f32 v16, v16, v17")
    e("v_mul_f32 v32, s50, v32"); e("v_mul_f32 v16, s50, v16")
    e("v_exp_f32 v32, v32"); e("v_exp_f32 v16, v16"); e("s_nop 0")
    e("v_mul_f32 v34, v34, v32"); e("v_fma_f32 v34, v18, v16, v34")
    e("v_rcp_f32 v34, v34"); e("s_nop 0"); e("v_mul_f32 v34, v34, v32"); e("s_nop 0")
    e("v_readlane_b32 s48, v34, 0"); e("v_readlane_b32 s49, v34, 32")
    e("s_lshl_b32 s3, s44, 6"); e("s_add_u32 s3, s3, s5"); e("s_lshl_b32 s3, s3, 9"); e(f"s_add_u32 s3, s3, {WS_O}")
    e("v_and_b32 v30, 31, v0"); e("v_lshlrev_b32 v30, 4, v30"); e("v_lshrrev_b32 v31, 5, v0"); e("v_lshl_add_u32 v30, v31, 13, v30")
    e("v_add_u32 v30, s3, v30"); e("v_add_u32 v31, 0x4000, v30")
    for k in range(4): e(f"v_mov_b32 v{41+2*k}, s26")
    e("s_mov_b32 s39, 128")
    e("s_branch L_vloop")

    lab("L_tail")
    c("---- waves 2,3: out projection of k-range (h,z) x 112 columns; wave 2: tiles 0-3, wave 3: tiles 4-6 ----")
    e("s_lshl_b32 s3, s4, 2"); e("s_lshr_b32 s41, s5, 2"); e("s_add_u32 s45, s3, s41")
    e("s_lshr_b32 s3, s45, 1"); e("s_lshl_b32 s3, s3, 8"); e("s_and_b32 s41, s45, 1"); e("s_lshl_b32 s41, s41, 6")
    e("s_add_u32 s3, s3, s41"); e("s_mul_i32 s3, s3, 896")
    e("s_and_b32 s46, s5, 3"); e("s_mul_i32 s46, s46, 7"); e("s_sub_u32 s48, s7, 2"); e("s_lshl_b32 s41, s48, 2")
    e("s_add_u32 s46, s46, s41")
    e("s_lshl_b32 s41, s46, 5"); e("s_add_u32 s3, s3, s41")
    e("s_add_u32 s28, s16, s3"); e("s_addc_u32 s29, s17, 0"); e("s_and_b32 s29, s29, 0xffff")
    e(f"s_sub_u32 s30, {4096*896}, s3"); e("s_mov_b32 s31, 0x20000")
    e("s_lshl_b32 s41, s48, 1"); e("s_sub_u32 s41, 7, s41")
    e("v_and_b32 v5, 7, v0"); e("v_min_u32 v5, s41, v5"); e("v_lshlrev_b32 v5, 4, v5")
    e("v_lshrrev_b32 v6, 3, v0"); e("v_mul_u32_u24 v6, 896, v6"); e("v_add_u32 v5, v5, v6")
    e("s_lshl_b32 s37, s48, 13"); e(f"s_add_u32 s37, s37, {S_}")
    e("v_lshrrev_b32 v6, 2, v3"); e("v_lshlrev_b32 v6, 3, v6"); e("v_add_u32 v6, v6, v4"); e("v_lshlrev_b32 v8, 8, v6")
    e("v_and_b32 v6, 3, v0"); e("v_lshl_add_u32 v8, v6, 3, v8"); e("v_add_u32 v8, s37, v8")
    NG = 4 if osplit else 8
    e("s_lshl_b32 s3, s6, 5"); e("s_add_u32 s3, s3, s45"); e("s_lshl_b32 s3, s3, 13"); e(f"s_add_u32 s3, s3, {WS_O}")
    if osplit: e("s_lshl_b32 s41, s48, 12"); e("s_add_u32 s3, s3, s41")
    e("v_lshlrev_b32 v9, 4, v0"); e("v_add_u32 v9, s3, v9"); e("v_add_u32 v14, 0x1000, v9")
    e("v_lshrrev_b32 v6, 5, v0"); e("v_mul_u32_u24 v15, 272, v6"); e("v_and_b32 v6, 31, v0"); e("v_lshl_add_u32 v15, v6, 3, v15")
    e(f"s_mul_i32 s41, s48, {4*544 if osplit else 0}"); e(f"s_add_u32 s41, s41, {OB}"); e("v_add_u32 v100, s41, v15")
    for u in range(1, NG): e(f"v_add_u32 v{100+u}, {u*544}, v100")
    e("v_mul_u32_u24 v16, 272, v3"); e("v_lshl_add_u32 v16, v4, 4, v16"); e(f"v_add_u32 v16, {OB}, v16")
    e("v_mov_b32 v17, 1")
    c("record (tile, batch quad, column half) of source src: one 128 B line; lane group g holds tile +(g>>1), quad g&1")
    e("s_mul_i32 s3, s6, 28"); e("s_add_u32 s3, s3, s46"); e("s_lshl_b32 s3, s3, 14")
    e("s_lshl_b32 s41, s45, 7"); e("s_add_u32 s3, s3, s41"); e(f"s_add_u32 s3, s3, {WS_Y}")
    e("v_lshrrev_b32 v6, 3, v0"); e("v_lshlrev_b32 v6, 12, v6"); e("v_and_b32 v7, 7, v0"); e("v_lshl_add_u32 v6, v7, 4, v6")
    e("v_add_u32 v10, s3, v6"); e("v_add_u32 v11, 0x8000, v10")
    e("s_and_b32 s3, s26, 0xfff"); e("v_mov_b32 v12, s3"); e("s_movk_i32 s50, 0xf000")
    WF = 128; OL = 24; DD = 56; YY = 72
    e("s_mov_b32 s38, 0")
    lds_wait_gt("s38", 4, "60", "v20", sleep=32)
    c("wo goes through the dead score area, one KiB every few units")
    for piece in range(2):
        e(f"s_mov_b32 s36, {64 + piece*8*WSTEP}"); e("s_mov_b32 m0, s37"); e(f"s_mov_b32 s41, {piece*32*896}"); e("s_mov_b32 s40, 0")
        lab(f"L_wo_p{piece}")
        lds_wait_gt("s38", 4, "s36", "v20", sleep=4)
        e(f"buffer_load_dwordx4 v5, s[28:31], s41 offen {pol} lds")
        e("s_add_u32 m0, m0, 1024"); e(f"s_add_u32 s36, s36, {WSTEP}"); e("s_add_u32 s40, s40, 1")
        e("s_cmp_eq_u32 s40, 4"); e(f"s_cselect_b32 s3, {(128-24)*896}, {8*896}") if False else None
        e("s_cmp_eq_u32 s40, 4"); e(f"s_cselect_b32 s3, {(128-32)*896}, 0"); e("s_add_u32 s41, s41, s3"); e(f"s_add_u32 s41, s41, {8*896}")
        e("s_cmp_lt_u32 s40, 8"); e(f"s_cbranch_scc1 L_wo_p{piece}")
        e("s_waitcnt vmcnt(0)")
        for s2_ in range(2):
            s = piece*2 + s2_
            for t in range(4):
                r = WF + (t*4 + s)*4
                e(f"ds_read_b64_tr_b16 v[{r}:{r+1}], v8 offset:{s2_*1024 + t*32}")
                e(f"ds_read_b64_tr_b16 v[{r+2}:{r+3}], v8 offset:{s2_*1024 + t*32 + 128}")
        e("s_waitcnt lgkmcnt(0)")
    if prew is not None:
        e("v_not_b32 v72, v12"); e("v_mov_b32 v73, v72"); e("v_mov_b32 v74, v72"); e("v_mov_b32 v75, v72")
        e(f"global_store_dwordx4 v10, v[72:75], s[24:25] {prew}")
        e("s_cmp_eq_u32 s7, 3"); e("s_cselect_b32 exec_hi, 0, -1")
        e(f"global_store_dwordx4 v11, v[72:75], s[24:25] {prew}")
        e("s_mov_b64 exec, -1"); e("s_waitcnt vmcnt(0)")
    lds_wait_gt("s38", 4, str(OW-2), "v20", sleep=4)
    lds_wait_gt("s38", 4, str(OW), "v20")
    if not osplit: e("s_cmp_eq_u32 s7, 3"); e("s_cbranch_scc1 L_w3wait")
    gather("L_opoll", OL, lambda u: f"v{9 if u < 4 else 14}, s[24:25] offset:{(u%4)*1024}", NG, 0 if osplit else SLP, SLPN)
    for u in range(NG): e(f"ds_write2_b32 v{100+u}, v{OL+4*u}, v{OL+4*u+2} offset1:1")
    if osplit:
        e("s_mov_b64 exec, 1"); e("ds_add_rtn_u32 v20, v2, v17 offset:16"); e("s_mov_b64 exec, -1")
        e("s_waitcnt lgkmcnt(0)"); e("v_readfirstlane_b32 s38, v20"); e("s_add_u32 s38, s38, 1")
        lds_wait_gt("s38", 16, "1", "v20")
    else:
        one("ds_write_b32 v2, v17 offset:16")
        e("s_branch L_ofr")
        lab("L_w3wait")
        e("s_mov_b32 s38, 0")
        lds_wait_gt("s38", 16, "0", "v20")
        lab("L_ofr")
    stamp(8, False)
    for s_ in range(4): e(f"ds_read_b128 v[{OL+8*s_}:{OL+8*s_+3}], v16 offset:{s_*64}")
    e("s_cmp_eq_u32 s7, 3")
    e("s_waitcnt lgkmcnt(0)")
    def mm(t):
        out = []
        for s in range(4):
            r = WF + (t*4 + s)*4; d = DD + 4*t; o = OL + 8*s
            cc = "0" if s == 0 else f"v[{d}:{d+3}]"
            out.append(f"v_mfma_f32_16x16x32_bf16 v[{d}:{d+3}], v[{o}:{o+3}], v[{r}:{r+3}], {cc}")
        return out
    def post(p):
        d = DD + 8*p; y = YY + 4*p
        return ([f"v_permlane32_swap_b32 v{d+r}, v{d+4+r}" for r in range(4)] +
                [f"v_add_f32 v{y+r}, v{d+r}, v{d+4+r}" for r in range(4)] +
                [f"v_and_or_b32 v{y+r}, v{y+r}, s50, v12" for r in range(4)] +
                [f"global_store_dwordx4 v{10+p}, v[{y}:{y+3}], s[24:25] {ypol or hpol}"])
    for x in mm(0) + mm(1) + mm(2): e(x)
    e("s_cbranch_scc1 L_t3")
    for x in mm(3) + post(0) + post(1): e(x)
    e("s_branch L_tend")
    lab("L_t3")
    e("s_nop 2")
    for x in post(0) + post(1)[:-1]: e(x)
    e("s_mov_b32 exec_hi, 0")
    e(post(1)[-1])
    lab("L_tend")
    stamp(9, False)
    e("s_mov_b64 exec, 1"); e("s_waitcnt vmcnt(0)"); e("ds_add_u32 v2, v17 offset:20")
    if stamps:
        stamp(10)
        e("s_cmp_eq_u32 s7, 3"); e("s_cbranch_scc1 L_d3")
        dump([(10,15),(8,16),(9,17)])
        e("s_endpgm")
        lab("L_d3")
        dump([(1,3),(2,4),(3,5),(3,6),(5,7)])
    lab("L_done")
    e("s_endpgm")
    L.append('.section .rodata,"a"'); L.append(".p2align 6")
    L.append(f".amdhsa_kernel {KNAME}")
    L.append("  .amdhsa_next_free_vgpr 256"); L.append("  .amdhsa_next_free_sgpr 102"); L.append("  .amdhsa_accum_offset 256")
    L.append("  .amdhsa_group_segment_fixed_size 0"); L.append("  .amdhsa_kernarg_size 104"); L.append("  .amdhsa_user_sgpr_count 2")
    L.append("  .amdhsa_user_sgpr_kernarg_segment_ptr 1"); L.append("  .amdhsa_system_sgpr_workgroup_id_x 1"); L.append(".end_amdhsa_kernel")
    return "\n".join(L) + "\n"

if __name__ == "__main__":
    b = dict(stamps=True)
    open("k8.s", "w").write(gen())
    open("a0.s", "w").write(gen(**b))
    open("a1.s", "w").write(gen(**b, prew="sc1"))
    open("a2.s", "w").write(gen(**b, prew=""))
    open("a3.s", "w").write(gen(**b, ypol="sc0 sc1"))
    open("a4.s", "w").write(gen(**b, ypol="sc1 nt"))
    open("a5.s", "w").write(gen(**b, DIST=4))
    open("a6.s", "w").write(gen(**b, OW=127))
    open("a7.s", "w").write(gen(**b, OW=125))
    open("a8.s", "w").write(gen(**b, touch=12))
```
